```python
import torch

def _softmax(x, axis=-1):
    return torch.softmax(x, dim=axis)
def _gelu(x):
    return torch.nn.functional.gelu(x, approximate="tanh")
def _silu(x):
    return torch.nn.functional.silu(x)
def _sigmoid(x):
    return torch.sigmoid(x)
def _layernorm(x, axis=-1, eps=1e-5):
    m = x.mean(dim=axis, keepdim=True)
    v = x.var(dim=axis, keepdim=True, unbiased=False)
    return (x - m) / torch.sqrt(v + eps)
def _scatter_add(tgt, idx, src, axis=0):
    return tgt.clone().index_add_(axis, idx, src)
def _segment_sum(src, seg, n):
    out = torch.zeros((n,) + src.shape[1:], dtype=src.dtype)
    return out.index_add_(0, seg, src)
def _pad(x, pw):
    flat = tuple(v for pair in reversed(pw) for v in pair)
    return torch.nn.functional.pad(x, flat)

kernel_name = 'gated_mix__ssm_conv_h3__mha_block__prompt'

def setup_inputs():

    _w = (lambda a: (lambda t: t.to(torch.bfloat16) if t.is_floating_point() else t)(torch.as_tensor(a)))
    def _A_setup():
        B, S, D = 1, 2048, 448
        ks = 4
        return {
            "q": _w((lambda *s: torch.randn(*s, dtype=torch.bfloat16) * 0.05)(B, S, D)),
            "k": _w((lambda *s: torch.randn(*s, dtype=torch.bfloat16) * 0.4)(B, S, D)),
            "v": _w((lambda *s: torch.randn(*s, dtype=torch.bfloat16) * 0.4)(B, S, D)),
            "shift_k": _w((lambda *s: torch.randn(*s, dtype=torch.bfloat16) * 0.4)(D, ks) * 0.5),
            "ssm_k": _w((lambda *s: torch.randn(*s, dtype=torch.bfloat16) * 0.8)(D, S) * (1.0 / S ** 0.5)),
            "ssm_D": _w((lambda *s: torch.randn(*s, dtype=torch.bfloat16) * 0.4)(D)),
        }
    _A_in = _A_setup()

    def _B_setup():
        B, S, D, H = 1, 2048, 448, 16
        return {
            "x": _w((lambda *s: torch.randn(*s, dtype=torch.bfloat16) * 0.05)(B, S, D)),
            "wqkv": _w((lambda *s: torch.randn(*s, dtype=torch.bfloat16) * 0.8)(D, 3 * D)),
            "wo": _w((lambda *s: torch.randn(*s, dtype=torch.bfloat16) * 0.05)(D, D)),
        }
    _B_in = _B_setup()

    return {
        "A_q": _A_in["q"],
        "A_k": _A_in["k"],
        "A_v": _A_in["v"],
        "A_shift_k": _A_in["shift_k"],
        "A_ssm_k": _A_in["ssm_k"],
        "A_ssm_D": _A_in["ssm_D"],
        "B_x": _B_in["x"],
        "B_wqkv": _B_in["wqkv"],
        "B_wo": _B_in["wo"],
        "gate_w": _w((lambda *s: torch.randn(*s, dtype=torch.bfloat16) * 0.05)(448) * 16.0),
    }

def reference(A_q, A_k, A_v, A_shift_k, A_ssm_k, A_ssm_D, B_x, B_wqkv, B_wo, gate_w):
    def _A_ref(q, k, v, shift_k, ssm_k, ssm_D):
        B, S, D = q.shape
        ks = shift_k.shape[-1]
        k_pad = _pad(k, ((0, 0), (ks - 1, 0), (0, 0)))
        k_shift = torch.zeros_like(k)
        for t in range(ks):
            k_shift = k_shift + k_pad[:, t:t + S, :] * shift_k[:, ks - 1 - t][None, None, :]
        kv = k_shift * v
        L = 2 * S
        kv_pad = _pad(kv, ((0, 0), (0, S), (0, 0)))
        kf_pad = _pad(ssm_k, ((0, 0), (0, S)))
        kv_f = (lambda x, axes=(-2,-1): torch.fft.rfft2(x.float(), dim=axes))(kv_pad[:, None, :, :], axes=(1, 2))
        kf_f = (lambda x, axes=(-2,-1): torch.fft.rfft2(x.float(), dim=axes))(kf_pad[:, None, :], axes=(1, 2))
        kf_f = (lambda x, *d: x.permute(*d))(kf_f, 1, 2, 0)
        y_f = kv_f * kf_f[None, :, :, :]
        y = (lambda x, s, axes=(-2,-1): torch.fft.irfft2(x, s=s, dim=axes).to(torch.bfloat16))(y_f, (1, L), axes=(1, 2))[:, 0, :S, :]
        y = y + kv * ssm_D[None, None, :]
        return q * y

    def _B_ref(x, wqkv, wo):
        B, S, D = x.shape
        H = 16
        Dh = D // H
        qkv = (lambda x, *d: x.permute(*d))((x @ wqkv).reshape(B, S, 3, H, Dh), 2, 0, 3, 1, 4)
        q, k, v = qkv[0], qkv[1], qkv[2]
        scores = torch.einsum("bhqd,bhkd->bhqk", q, k) * (Dh ** -0.5)
        p = _softmax(scores, axis=-1)
        o = torch.einsum("bhqk,bhkd->bhqd", p, v)
        return (lambda x, *d: x.permute(*d))(o, 0, 2, 1, 3).reshape(B, S, D) @ wo

    x = A_q
    g = _sigmoid((x * gate_w).sum(-1, keepdims=True))
    a = _A_ref(x, A_k, A_v, A_shift_k, A_ssm_k, A_ssm_D)
    b = _B_ref(x, B_wqkv, B_wo)
    return g * a + (1 - g) * b
```

```python
from gen import *

class Cnt:
    def __init__(self, e, name, cap): self.e, self.name, self.cap, self.ops, self.done = e, name, cap, [], 0
    def issue(self, tag): self.ops.append(tag)
    def wait(self, *tags):
        idx = max((i for i, t in enumerate(self.ops) if t in tags), default=-1)
        for t in tags: assert t in self.ops, t
        if idx < self.done: return
        n = len(self.ops) - 1 - idx
        assert n <= self.cap, (self.name, n)
        self.e(f"s_waitcnt {self.name}({n})")
        self.done = idx + 1
    def outstanding(self): return len(self.ops) - self.done

K2_WREG = 24576
K2_OB = 4 * K2_WREG
K2_FL = K2_OB + 4 * 12288
K2_LDS = K2_FL + 1024
LAG = 2
def k2(e):
    L = "k2_attn_kernel"
    head(e, L)
    SWS, SH, SU, SHP = 44, 48, 52, 56
    Q, S, CF, KVR = 16, 48, 112, 144
    AO, AC0, AC1 = 0, 64, 80
    e("s_cmp_ge_u32 s2, 256\n s_cbranch_scc1 K2_END")
    load_args(e)
    e(f"""v_lshrrev_b32 v2, 6, v0
          v_and_b32 v1, 63, v0
          s_and_b32 s4, s2, 7
          v_readfirstlane_b32 s3, v2
          s_lshl_b32 s4, s4, 1
          s_bfe_u32 s7, s2, 0x10003
          s_add_u32 s4, s4, s7
          s_lshr_b32 s5, s2, 4
          s_mov_b32 s6, 0
          v_lshlrev_b32 v2, 4, v1
          v_mov_b32 v3, 0xdddd
          v_and_b32 v4, 31, v1
          v_lshrrev_b32 v5, 5, v1""")
    e(f"""s_lshl_b32 s60, s4, 17
          s_lshl_b32 s7, s5, 13
          s_add_u32 s60, s60, s7
          s_lshl_b32 s61, s4, 18
          s_lshl_b32 s7, s3, 16
          s_add_u32 s61, s61, s7
          s_add_u32 s61, s61, {KV:#x}
          s_lshr_b32 s7, s3, 1
          s_lshl_b32 s62, s2, 1
          s_add_u32 s62, s62, s7
          s_and_b32 s63, s3, 1
          s_lshl_b32 s63, s63, 4
          s_mul_i32 s64, s3, {K2_WREG}
          s_mov_b32 s66, 0x0fffffff
          s_mov_b32 s67, 0x0fffffff""")
    e(f"""v_lshrrev_b32 v11, 3, v4
          v_sub_u32 v11, v11, v5
          v_and_b32 v12, 7, v4
          v_lshlrev_b32 v12, 6, v12
          s_add_u32 s7, s64, 7168
          v_add_u32 v12, s7, v12""")
    for tk in range(2):
        e(f"""v_add_u32 v13, {3-2*tk}, v11
              v_lshrrev_b32 v14, 2, v13
              v_and_b32 v13, 3, v13
              v_lshl_add_u32 v{6+tk}, v14, 10, v12
              v_lshl_add_u32 v{6+tk}, v13, 4, v{6+tk}""")
    e(f"""v_mul_u32_u24 v8, 80, v4
          v_lshl_add_u32 v8, v5, 4, v8
          v_add_u32 v8, s64, v8
          v_and_b32 v13, 3, v1
          v_bfe_u32 v14, v1, 2, 3
          v_lshlrev_b32 v9, 11, v5
          v_lshl_add_u32 v9, v13, 4, v9
          v_lshl_add_u32 v9, v14, 1, v9
          v_add_u32 v9, 2, v9
          s_mul_i32 s7, s63, 80
          s_add_u32 s7, s7, 1200
          v_subrev_u32 v10, s7, v2""")
    e(f"""v_cmp_eq_u32 vcc, 28, v4
          v_mov_b32 v13, 0x3f803f80
          s_nop 0
          v_cndmask_b32 v13, 0, v13, vcc""")
    for s in range(4):
        for r in range(8): e(f"v_mov_b32 v{KVR+16*s+8+r}, v13")
    e("s_waitcnt lgkmcnt(0)")
    srd(e, SWS, P_WS, WS_END)
    srd(e, SH, P_H, 448 * 4096)
    srd(e, SU, P_WS, 5120)
    srd(e, SHP, P_WS, WS_END)
    e(f"""s_mul_i32 s7, s62, 5120
          s_add_u32 s7, s7, {UT:#x}
          s_add_u32 s{SU}, s{SU}, s7
          s_addc_u32 s{SU+1}, s{SU+1}, 0
          s_cmp_lt_u32 s2, 224
          s_cselect_b32 s{SH+2}, s{SH+2}, 0
          s_cselect_b32 s{SU+2}, s{SU+2}, 0
          s_cselect_b32 s{SHP+2}, s{SHP+2}, 0
          s_lshl_b32 s65, s62, 12
          s_lshl_b32 s7, s63, 6
          s_add_u32 s65, s65, s7""")
    e("K2_RESTART:")
    vm, lg = Cnt(e, "vmcnt", 63), Cnt(e, "lgkmcnt", 15)
    def ldQ(j):
        e(f"""s_add_u32 s7, s3, {j}
              s_and_b32 s7, s7, 3
              s_lshl_b32 s7, s7, 11
              s_add_u32 s7, s7, s60""")
        for f in range(2):
            e(f"buffer_load_dwordx4 {vr(Q+8*j+4*f,4)}, v2, {sr(SWS,4)}, s7 offen offset:{1024*f}"); vm.issue(("Q", j))
    def kvoff(i):
        e(f"""s_add_u32 s7, s5, {i}
              s_and_b32 s7, s7, 15
              s_lshl_b32 s7, s7, 12
              s_add_u32 s7, s7, s61""")
    def ldK(i):
        kvoff(i)
        for f in range(2):
            e(f"buffer_load_dwordx4 {vr(KVR+16*(i%4)+4*f,4)}, v2, {sr(SWS,4)}, s7 offen offset:{1024*f}"); vm.issue(("K", i))
    def ldV(i):
        kvoff(i)
        e("s_mov_b64 exec, s[66:67]")
        for f in range(2):
            e(f"buffer_load_dwordx4 {vr(KVR+16*(i%4)+8+4*f,4)}, v2, {sr(SWS,4)}, s7 offen offset:{2048+1024*f}"); vm.issue(("V", i))
        e("s_mov_b64 exec, -1")
    def ldG():
        for i in range(7):
            e(f"""s_add_u32 m0, s64, {1024*i}
                  v_add_u32 v11, {1024*i}, v10
                  buffer_load_dwordx4 v11, {sr(SU,4)}, 0 offen lds"""); vm.issue(("G", 0))
    def ldT(j):
        e(f"s_add_u32 m0, s64, {7168+1024*j}")
        if j == 0:
            e(f"""s_mov_b32 exec_hi, 0
                  s_cmp_eq_u32 s63, 0
                  s_cbranch_scc1 K2_T0A
                  s_sub_u32 s7, s65, 64
                  buffer_load_dwordx4 v9, {sr(SH,4)}, s7 offen lds
                  s_branch K2_T0B
                  K2_T0A:
                  s_lshl_b32 s7, s62, 7
                  s_add_u32 s7, s7, {HP:#x}
                  buffer_load_dwordx4 v9, {sr(SHP,4)}, s7 offen lds
                  K2_T0B:
                  s_not_b64 exec, exec
                  v_subrev_u32 v11, 64, v9
                  buffer_load_dwordx4 v11, {sr(SH,4)}, s65 offen lds
                  s_mov_b64 exec, -1""")
            vm.issue(("T", 0)); vm.issue(("T", 0))
        else:
            e(f"""s_add_u32 s7, s65, {64*j-64}
                  buffer_load_dwordx4 v9, {sr(SH,4)}, s7 offen lds"""); vm.issue(("T", j))
    ldQ(0); ldK(0); ldQ(1); ldV(0); ldQ(2); ldQ(3); ldK(1); ldV(1)
    ldG(); ldT(0); ldT(1); ldK(2); ldV(2); ldT(2); ldK(3)
    for i in range(96): e(f"v_accvgpr_write_b32 a{i}, 0")

    def M_S(n, f):
        i, j = n // 4, n % 4
        vm.wait(("K", i), ("Q", j))
        d = vr(S + 16 * j, 16)
        e(f"v_mfma_f32_32x32x16_bf16 {d}, {vr(KVR+16*(i%4)+4*f,4)}, {vr(Q+8*j+4*f,4)}, {d if f else 0}")
    def M_PV(n, f):
        i, j = n // 4, n % 4
        vm.wait(("V", i))
        e(f"v_smfmac_f32_32x32x32_bf16 {ar(AO+16*j,16)}, {vr(KVR+16*(i%4)+8+4*f,4)}, {vr(S+16*j+8*f,8)}, v3")
    def cf(kind, tk): return CF + 16 * tk + 4 * {"T0": 0, "T1": 1, "Ga": 2, "Gb": 3}[kind]
    def rd(kind, tk, g):
        if g > 15: return
        if kind[0] == "T":
            vm.wait(("T", g), ("T", g + 1))
            e(f"ds_read_b128 {vr(cf(kind,tk),4)}, v{6+tk} offset:{1024*g+512*(kind=='T1')}")
        else:
            vm.wait(("G", 0))
            e(f"ds_read_b128 {vr(cf(kind,tk),4)}, v8 offset:{((47 if kind=='Ga' else 15)-g)*80+32*tk}")
        lg.issue((kind, tk, g))
    def M_C(g, k):
        tk, c = k // 3, k % 3
        a, b, acc = [("T0", "Ga", AC1), ("T0", "Gb", AC0), ("T1", "Gb", AC1)][c]
        if g >= 0:
            lg.wait((a, tk, g), (b, tk, g))
            e(f"v_mfma_f32_32x32x16_bf16 {ar(acc,16)}, {vr(cf(a,tk),4)}, {vr(cf(b,tk),4)}, {ar(acc,16)}")
        if g >= -1:
            for kind in [["Ga"], ["T0"], ["Gb", "T1"]][c]: rd(kind, tk, g + 1)
    M_S(0, 0); M_S(0, 1)
    e("s_nop 7\n s_nop 3")
    for it in range(16):
        g = it - LAG
        for half in range(2):
            nA = 4 * it + 2 * half; nB = nA + 1
            slots = {0: lambda: M_S(nA + 1, 0), 3: lambda: M_S(nA + 1, 1),
                     6: lambda: M_PV(nA - 1, 1) if nA > 0 else None, 9: lambda: M_C(g, 3 * half),
                     12: lambda: M_PV(nA, 0), 15: lambda: M_C(g, 3 * half + 1),
                     17: lambda: M_S(nB + 1, 0) if nB < 63 else None, 20: lambda: M_S(nB + 1, 1) if nB < 63 else None,
                     23: lambda: M_PV(nA, 1), 26: lambda: M_PV(nB, 0), 29: lambda: M_C(g, 3 * half + 2)}
            for x in range(32):
                if x in slots: slots[x]()
                n = nA if x < 16 else nB
                r = S + 16 * (n % 4) + x % 16
                e(f"v_exp_f32 v{r}, v{r}")
                if half == 0 and x == 7 and it + 3 < 16: ldV(it + 3)
                if half == 1 and x == 4 and it + 4 < 16: ldK(it + 4)
                if half == 0 and x == 21 and it + 3 <= 16: ldT(it + 3)
    e("s_nop 1")
    M_PV(63, 1)
    for g in range(16 - LAG, 16):
        for k in range(6): M_C(g, k)
    e("s_nop 7\n s_nop 7")
    e(f"s_mov_b32 s8, {f32(2.0**-40)}\n s_mov_b32 s9, {f32(2.0**40)}\n s_mov_b64 s[10:11], 0")
    for j in range(4):
        e(f"""v_accvgpr_read_b32 v11, a{AO+16*j+12}
              s_nop 0
              v_cmp_nle_f32 vcc, s8, v11
              s_or_b64 s[10:11], s[10:11], vcc
              v_cmp_nge_f32 vcc, s9, v11
              s_or_b64 s[10:11], s[10:11], vcc""")
    e(f"""v_mov_b32 v11, s11
          s_lshl_b32 s7, s3, 2
          s_add_u32 s7, s7, {K2_FL}
          v_mov_b32 v12, s7
          ds_write_b32 v12, v11""")
    for j in range(1, 4):
        e(f"""s_add_u32 s7, s3, {j}
              s_and_b32 s7, s7, 3
              s_mul_i32 s7, s7, 12288
              s_add_u32 s7, s7, {K2_OB+(j-1)*4096}
              v_add_u32 v11, s7, v2""")
        for g in range(4):
            e(f"ds_write_b128 v11, {ar(AO+16*j+4*g,4)} offset:{1024*g}")
    YV = CF
    e(f"""v_add_u32 v11, s64, v2
          s_cmp_eq_u32 s63, 0
          s_cbranch_scc1 K2_XA""")
    for par, (keep, give) in enumerate(((AC1, AC0), (AC0, AC1))):
        if par: e("K2_XA:")
        for g in range(4): e(f"ds_write_b128 v11, {ar(give+4*g,4)} offset:{1024*g}")
        for r in range(16): e(f"v_accvgpr_read_b32 v{YV+r}, a{keep+r}")
        if not par: e("s_branch K2_XB")
    e("K2_XB:")
    for r in range(16): e(f"v_accvgpr_read_b32 v{S+r}, a{AO+r}")
    e(f"""s_xor_b32 s7, s3, 1
          s_mul_i32 s7, s7, {K2_WREG}
          v_add_u32 v12, s7, v2
          s_mul_i32 s7, s3, 12288
          s_add_u32 s7, s7, {K2_OB}
          v_add_u32 v11, s7, v2
          v_mov_b32 v13, {K2_FL}
          s_waitcnt lgkmcnt(0)
          s_barrier
          ds_read_b128 {vr(KVR,4)}, v13""")
    for p in range(3):
        for g in range(4): e(f"ds_read_b128 {vr(S+16+16*p+4*g,4)}, v11 offset:{4096*p+1024*g}")
    e(f"""s_waitcnt lgkmcnt(12)
          v_or3_b32 v13, v{KVR}, v{KVR+1}, v{KVR+2}
          v_or_b32 v13, v13, v{KVR+3}
          s_nop 0
          v_readfirstlane_b32 s7, v13
          s_nop 3
          s_andn2_b32 s7, s7, s6
          s_cbranch_scc1 K2_SLOW""")
    for p in range(3):
        e(f"s_waitcnt lgkmcnt({[8, 8, 4][p]})")
        if p == 0:
            for g in range(4): e(f"ds_read_b128 {vr(YV+16+4*g,4)}, v12 offset:{1024*g}")
        for r in range(16): e(f"v_add_f32 v{S+r}, v{S+r}, v{S+16+16*p+r}")
    e(f"""v_mov_b32 v13, v{S+12}
          v_mov_b32 v14, v{S+12}
          s_nop 1
          v_permlane32_swap_b32 v14, v13
          s_nop 1
          v_rcp_f32 v13, v13
          s_lshl_b32 s7, s5, 2
          s_add_u32 s7, s7, s3
          s_lshl_b32 s7, s7, 15
          s_lshl_b32 s8, s4, 11
          s_add_u32 s7, s7, s8
          s_add_u32 s7, s7, {OF:#x}""")
    for r in range(16): e(f"v_mul_f32 v{S+r}, v{S+r}, v13")
    for r in range(8): e(f"v_cvt_pk_bf16_f32 v{S+16+r}, v{S+2*r}, v{S+2*r+1}")
    e(f"""buffer_store_dwordx4 {vr(S+16,4)}, v2, {sr(SWS,4)}, s7 offen
          buffer_store_dwordx4 {vr(S+20,4)}, v2, {sr(SWS,4)}, s7 offen offset:1024
          s_cmp_ge_u32 s2, 224
          s_cbranch_scc1 K2_END
          s_waitcnt lgkmcnt(0)""")
    for r in range(16): e(f"v_add_f32 v{YV+r}, v{YV+r}, v{YV+16+r}")
    for r in range(8): e(f"v_cvt_pk_bf16_f32 v{YV+16+r}, v{YV+2*r}, v{YV+2*r+1}")
    e(f"""v_mul_u32_u24 v11, 28672, v4
          v_lshl_add_u32 v11, v5, 4, v11
          s_mul_i32 s7, s63, {2*28672}
          s_lshl_b32 s8, s62, 6
          s_add_u32 s7, s7, s8
          s_add_u32 s7, s7, {YT:#x}
          buffer_store_dwordx4 {vr(YV+16,4)}, v11, {sr(SWS,4)}, s7 offen
          buffer_store_dwordx4 {vr(YV+20,4)}, v11, {sr(SWS,4)}, s7 offen offset:32
          K2_END:
          s_endpgm""")
    MX = CF
    e("K2_SLOW:\n s_waitcnt lgkmcnt(0)\n s_barrier\n s_mov_b32 s6, -1\n s_mov_b32 s8, 0")
    for j in range(4): e(f"v_mov_b32 v{MX+j}, 0xff7fffff")
    e(f"""K2_MAXLOOP:
          s_add_u32 s7, s61, s8
          buffer_load_dwordx4 {vr(KVR,4)}, v2, {sr(SWS,4)}, s7 offen
          buffer_load_dwordx4 {vr(KVR+4,4)}, v2, {sr(SWS,4)}, s7 offen offset:1024
          s_waitcnt vmcnt(0)""")
    for j in range(4):
        d = vr(S + 16 * j, 16)
        e(f"""v_mfma_f32_32x32x16_bf16 {d}, {vr(KVR,4)}, {vr(Q+8*j,4)}, 0
              v_mfma_f32_32x32x16_bf16 {d}, {vr(KVR+4,4)}, {vr(Q+8*j+4,4)}, {d}""")
    e("s_nop 7\n s_nop 7")
    for j in range(4):
        for r in range(0, 16, 2): e(f"v_max3_f32 v{MX+j}, v{S+16*j+r}, v{S+16*j+r+1}, v{MX+j}")
    e(f"""s_add_u32 s8, s8, 4096
          s_cmp_lt_u32 s8, 65536
          s_cbranch_scc1 K2_MAXLOOP""")
    for j in range(4):
        e(f"""s_add_u32 s7, s3, {j}
              s_and_b32 s7, s7, 3
              s_lshl_b32 s7, s7, 10
              s_lshl_b32 s8, s3, 8
              s_add_u32 s7, s7, s8
              s_add_u32 s7, s7, {K2_OB}
              v_lshl_add_u32 v11, v1, 2, s7
              ds_write_b32 v11, v{MX+j}""")
    e(f"""s_lshl_b32 s7, s3, 10
          s_add_u32 s7, s7, {K2_OB}
          v_lshl_add_u32 v11, v4, 2, s7
          s_waitcnt lgkmcnt(0)
          s_barrier""")
    for p in range(8): e(f"ds_read_b32 v{S+p}, v11 offset:{128*p}")
    e("s_waitcnt lgkmcnt(0)")
    for p in range(1, 8): e(f"v_max_f32 v{S}, v{S}, v{S+p}")
    e(f"""v_sub_f32 v12, 0, v{S}
          v_and_b32 v13, 0xffff0000, v12
          v_sub_f32 v12, v12, v13
          v_and_b32 v14, 0xffff0000, v12
          v_sub_f32 v12, v12, v14
          v_lshrrev_b32 v13, 16, v13
          v_or_b32 v{S+8}, v13, v14
          v_lshrrev_b32 v{S+9}, 16, v12
          s_and_b32 s8, s4, 1
          s_cmp_eq_u32 s8, 0
          s_cselect_b32 s8, 1544, 0
          s_lshl_b32 s7, s3, 11
          s_add_u32 s7, s7, s60
          s_add_u32 s7, s7, s8
          v_lshlrev_b32 v11, 4, v4
          buffer_store_dwordx2 {vr(S+8,2)}, v11, {sr(SWS,4)}, s7 offen
          s_waitcnt vmcnt(0)
          s_barrier
          s_branch K2_RESTART""")
    return (L, 256, 256, K2_LDS, desc(L, 304, 208))

def k3(e):
    L = "k3_out_kernel"
    head(e, L)
    SWS, SX, SO = 44, 48, 52
    ACC, YA, FR, PB, YF, XF = 16, 32, 48, 112, 120, 128
    e("s_cmp_ge_u32 s2, 224\n s_cbranch_scc1 K3_END")
    load_args(e)
    e(f"""v_lshrrev_b32 v2, 6, v0
          v_and_b32 v1, 63, v0
          s_and_b32 s4, s2, 7
          v_readfirstlane_b32 s3, v2
          s_lshl_b32 s4, s4, 2
          s_bfe_u32 s7, s2, 0x20003
          s_add_u32 s4, s4, s7
          s_lshr_b32 s5, s2, 5
          s_add_u32 s6, s7, s5
          s_and_b32 s6, s6, 3
          v_lshlrev_b32 v2, 4, v1
          v_and_b32 v4, 31, v1
          v_lshrrev_b32 v5, 5, v1
          s_and_b32 s8, s3, 1
          s_lshr_b32 s9, s3, 1
          s_lshl_b32 s10, s4, 16
          s_add_u32 s10, s10, {OF:#x}
          s_lshl_b32 s11, s5, 16
          s_add_u32 s11, s11, {WOF:#x}
          s_cmp_eq_u32 s9, 0
          s_cselect_b32 s10, s10, s11
          s_lshl_b32 s11, s8, 15
          s_add_u32 s10, s10, s11
          s_lshl_b32 s12, s3, 15
          s_lshl_b32 s60, s4, 1
          s_add_u32 s60, s60, s8
          s_lshl_b32 s61, s5, 1
          s_add_u32 s61, s61, s9""")
    swap23(e, 6, 4, 7, 8)
    e(f"""v_lshlrev_b32 v6, 6, v6
          v_lshl_add_u32 v6, v5, 4, v6
          v_mul_u32_u24 v7, 896, v4
          v_lshl_add_u32 v7, v5, 4, v7
          v_lshlrev_b32 v8, 2, v4
          s_waitcnt lgkmcnt(0)""")
    srd(e, SWS, P_WS, WS_END); srd(e, SX, P_Q, XB); srd(e, SO, P_OUT, XB)
    e(f"""s_lshl_b32 s13, s6, 13
          s_mov_b32 s14, 0
          K3_DMA:
          s_add_u32 m0, s12, s13
          s_add_u32 s7, s10, s13""")
    for i in range(4): e(f"buffer_load_dwordx4 v2, {sr(SWS,4)}, s7 offen offset:{1024*i} lds")
    e(f"""s_add_u32 s13, s13, 4096
          s_and_b32 s13, s13, 0x7fff
          s_add_u32 s14, s14, 1
          s_cmp_lt_u32 s14, 8
          s_cbranch_scc1 K3_DMA
          s_mul_i32 s62, s60, 28672
          s_lshl_b32 s7, s61, 11
          s_add_u32 s7, s7, s62
          s_add_u32 s7, s7, {YT:#x}
          buffer_load_dwordx4 {vr(YF,4)}, v6, {sr(SWS,4)}, s7 offen
          buffer_load_dwordx4 {vr(YF+4,4)}, v6, {sr(SWS,4)}, s7 offen offset:32
          s_lshl_b32 s7, s61, 6
          s_add_u32 s62, s62, s7
          buffer_load_dwordx4 {vr(XF,4)}, v7, {sr(SX,4)}, s62 offen
          buffer_load_dwordx4 {vr(XF+4,4)}, v7, {sr(SX,4)}, s62 offen offset:32
          s_lshl_b32 s7, s60, 7
          s_add_u32 s7, s7, {GG:#x}
          buffer_load_dword v9, v8, {sr(SWS,4)}, s7 offen""")
    e(f"""v_lshrrev_b32 v10, 3, v4
          v_bfe_u32 v11, v4, 1, 1
          v_lshl_or_b32 v10, v10, 1, v11
          v_bfe_u32 v11, v4, 2, 1
          v_cmp_eq_u32 vcc, v11, v5
          v_and_b32 v12, 1, v4
          v_lshlrev_b32 v12, 4, v12
          v_cndmask_b32 v10, 63, v10, vcc
          v_mov_b32 v13, 0x3f80
          v_lshlrev_b32 v12, v12, v13""")
    for m in range(8):
        e(f"""v_cmp_eq_u32 vcc, {m}, v10
              s_nop 1
              v_cndmask_b32 v{PB+m}, 0, v12, vcc""")
    for i in range(16): e(f"v_mov_b32 v{ACC+i}, 0")
    e(f"""s_lshl_b32 s13, s6, 13
          s_add_u32 s7, s9, 2
          s_lshl_b32 s7, s7, 15
          v_add_u32 v10, s7, v2
          v_add_u32 v11, s11, v2
          s_mov_b32 s14, 0
          K3_LOOP:
          v_add_u32 v12, s13, v10
          v_add_u32 v13, s13, v11
          s_waitcnt vmcnt(29)
          s_cmp_lt_u32 s14, 1
          s_cbranch_scc1 K3_W
          s_waitcnt vmcnt(21)
          s_cmp_lt_u32 s14, 2
          s_cbranch_scc1 K3_W
          s_waitcnt vmcnt(13)
          s_cmp_lt_u32 s14, 3
          s_cbranch_scc1 K3_W
          s_waitcnt vmcnt(5)
          K3_W:
          s_barrier""")
    def rd(k):
        e(f"""ds_read_b128 {vr(FR+8*k,4)}, v12 offset:{1024*k}
              ds_read_b128 {vr(FR+8*k+4,4)}, v13 offset:{1024*k}""")
    for k in range(7): rd(k)
    for k in range(8):
        e(f"s_waitcnt lgkmcnt({12 if k == 0 else 2*(7-k)})")
        e(f"v_mfma_f32_32x32x16_bf16 {vr(ACC,16)}, {vr(FR+8*k,4)}, {vr(FR+8*k+4,4)}, {vr(ACC,16)}")
        if k == 0: rd(7)
    e(f"""s_add_u32 s13, s13, 8192
          s_and_b32 s13, s13, 0x7fff
          s_add_u32 s14, s14, 1
          s_cmp_lt_u32 s14, 4
          s_cbranch_scc1 K3_LOOP
          s_waitcnt vmcnt(0)
          v_mfma_f32_32x32x16_bf16 {vr(YA,16)}, {vr(YF,4)}, {vr(PB,4)}, 0
          v_mfma_f32_32x32x16_bf16 {vr(YA,16)}, {vr(YF+4,4)}, {vr(PB+4,4)}, {vr(YA,16)}
          v_sub_f32 v10, 1.0, v9
          s_mov_b32 s15, 0xffff0000""")
    for r in range(8):
        e(f"""v_lshlrev_b32 v{FR+2*r}, 16, v{XF+r}
              v_and_b32 v{FR+2*r+1}, s15, v{XF+r}""")
    for r in range(16): e(f"v_mul_f32 v{FR+r}, v9, v{FR+r}")
    for r in range(16): e(f"v_mul_f32 v{ACC+r}, v10, v{ACC+r}")
    for r in range(16): e(f"v_fmac_f32 v{ACC+r}, v{FR+r}, v{YA+r}")
    for r in range(8): e(f"v_cvt_pk_bf16_f32 v{FR+r}, v{ACC+2*r}, v{ACC+2*r+1}")
    e(f"""buffer_store_dwordx4 {vr(FR,4)}, v7, {sr(SO,4)}, s62 offen
          buffer_store_dwordx4 {vr(FR+4,4)}, v7, {sr(SO,4)}, s62 offen offset:32
          K3_END:
          s_endpgm""")
    return (L, 224, 256, 131072, desc(L, 136, 136))
```

```python
import math, sys

NAME = "gated_mix__ssm_conv_h3__mha_block__prompt"
QF, KV, UT, YT, OF, WOF, GG, HP, WS_END = 0x0, 0x200000, 0x600000, 0x840000, 0xA00000, 0xC00000, 0xC80000, 0xC90000, 0xCA0000
XB = 2048 * 896
OOB = 0x7FFF0000
QSCALE = math.log2(math.e) / math.sqrt(28.0)

import struct
def f32(x): return "0x%08x" % struct.unpack("<I", struct.pack("<f", x))[0]

class Asm:
    def __init__(self): self.l = []
    def __call__(self, s):
        for line in s.strip("\n").split("\n"):
            line = line.strip()
            if not line: continue
            self.l.append(line if line.endswith(":") or line.startswith(".") else "    " + line)
    def text(self): return "\n".join(self.l) + "\n"

def vr(b, n): return f"v[{b}:{b+n-1}]"
def ar(b, n): return f"a[{b}:{b+n-1}]"
def sr(b, n): return f"s[{b}:{b+n-1}]"

def srd(e, d, base, nbytes):
    e(f"""s_mov_b32 s{d}, s{base}
          s_mov_b32 s{d+1}, s{base+1}
          s_mov_b32 s{d+2}, {nbytes:#x}
          s_mov_b32 s{d+3}, 0x00020000""")

def head(e, label):
    e(f""".globl {label}
          .p2align 8
          .type {label},@function
          {label}:""")

def desc(label, vgpr, accum, sgpr=96):
    return f""".amdhsa_kernel {label}
  .amdhsa_next_free_vgpr {vgpr}
  .amdhsa_next_free_sgpr {sgpr}
  .amdhsa_accum_offset {accum}
  .amdhsa_group_segment_fixed_size 0
  .amdhsa_kernarg_size 104
  .amdhsa_user_sgpr_count 2
  .amdhsa_user_sgpr_kernarg_segment_ptr 1
  .amdhsa_system_sgpr_workgroup_id_x 1
.end_amdhsa_kernel
"""

P_Q, P_K, P_V, P_SK, P_H, P_D, P_BX, P_W, P_WO, P_GW, P_OUT, P_DBG, P_WS = 16, 18, 20, 22, 24, 26, 28, 30, 32, 34, 36, 38, 40

def load_args(e):
    e("""s_load_dwordx16 s[16:31], s[0:1], 0
         s_load_dwordx8 s[32:39], s[0:1], 64
         s_load_dwordx2 s[40:41], s[0:1], 96""")

def swap23(e, dst, src, t0, t1):
    e(f"""v_and_b32 v{t0}, 4, v{src}
          v_and_b32 v{t1}, 8, v{src}
          v_and_b32 v{dst}, 0x13, v{src}
          v_lshl_or_b32 v{dst}, v{t0}, 1, v{dst}
          v_lshrrev_b32 v{t1}, 1, v{t1}
          v_or_b32 v{dst}, v{dst}, v{t1}""")

K1_SLOT = 28672
K1_LDS = 5 * K1_SLOT
def k1(e):
    L = "k1_qkv_kernel"
    head(e, L)
    SX, SW, SWS, SA, SB, SC = 44, 48, 52, 56, 60, 64
    e("s_cmp_ge_u32 s2, 256\n s_cbranch_scc1 K1_END")
    load_args(e)
    e("""v_lshrrev_b32 v2, 6, v0
         v_and_b32 v1, 63, v0
         s_and_b32 s7, s2, 7
         v_readfirstlane_b32 s3, v2
         s_lshr_b32 s8, s2, 3
         s_mul_i32 s7, s7, 31
         s_add_u32 s7, s7, s8
         s_cmp_lt_u32 s8, 31
         s_cselect_b32 s6, 1, 0
         s_cmp_lt_u32 s7, 242
         s_cselect_b32 s6, s6, 0
         s_mul_i32 s4, s7, 10923
         s_lshr_b32 s4, s4, 16
         s_mul_i32 s5, s4, 6
         s_sub_u32 s5, s7, s5
         s_cmp_lt_u32 s7, 132
         s_cbranch_scc1 K1_MAPPED
         s_sub_u32 s7, s7, 132
         s_mul_i32 s4, s7, 13108
         s_lshr_b32 s4, s4, 16
         s_mul_i32 s5, s4, 5
         s_sub_u32 s5, s7, s5
         s_add_u32 s5, s5, 6
         K1_MAPPED:""")
    e("""v_lshrrev_b32 v6, 3, v1
         v_and_b32 v7, 7, v1
         v_lshrrev_b32 v8, 4, v1
         v_xor_b32 v7, v7, v8
         v_mul_u32_u24 v3, 896, v6
         v_lshl_add_u32 v3, v7, 4, v3
         v_xor_b32 v4, 64, v3
         v_and_b32 v7, 15, v1
         v_lshlrev_b32 v9, 2, v8
         v_xor_b32 v7, v7, v9
         v_mul_u32_u24 v5, 2688, v8
         v_lshl_add_u32 v5, v7, 4, v5""")
    e(f"""s_cmp_eq_u32 s5, 10
          s_cselect_b32 s7, 8, 16
          v_mov_b32 v9, {OOB:#x}
          v_cmp_gt_u32 vcc, s7, v7
          s_nop 1
          v_cndmask_b32 v5, v9, v5, vcc""")
    e("s_waitcnt lgkmcnt(0)")
    srd(e, SX, P_Q, XB); srd(e, SW, P_W, 448 * 2688); srd(e, SWS, P_WS, WS_END)
    e("""s_cmp_eq_u32 s3, 3
         s_cbranch_scc1 K1_LD_G
         s_cmp_ge_u32 s2, 224
         s_cbranch_scc1 K1_LD_H
         s_cmp_eq_u32 s3, 2
         s_cbranch_scc1 K1_LD_WO""")
    srd(e, SA, P_K, XB); srd(e, SB, P_V, XB); srd(e, SC, P_SK, 448 * 8)
    e("""s_mul_i32 s9, s2, 9363
         s_lshr_b32 s9, s9, 16
         s_mul_i32 s10, s9, 7
         s_sub_u32 s10, s2, s10
         s_lshl_b32 s11, s9, 1
         s_add_u32 s11, s11, s3
         s_mul_i32 s12, s11, 28672
         s_lshl_b32 s13, s10, 7
         s_add_u32 s12, s12, s13
         v_and_b32 v10, 15, v1
         v_mul_u32_u24 v11, 7168, v8
         v_lshl_add_u32 v11, v10, 3, v11
         v_add_u32 v11, s12, v11
         v_subrev_u32 v12, 2688, v11
         s_movk_i32 s14, 4480
         s_lshl_b32 s13, s10, 9
         v_lshlrev_b32 v13, 5, v10""")
    KR, VR_, SKR = 64, 86, 104
    for r in range(3):
        e(f"buffer_load_dwordx2 {vr(KR+2*r,2)}, v12, {sr(SA,4)}, 0 offen offset:{896*r}")
    for arr, base, sd in ((0, KR + 6, SA), (1, VR_, SB)):
        for r in range(8):
            so, im = ("0", 896 * r) if r < 5 else ("s14", 896 * (r - 5))
            e(f"buffer_load_dwordx2 {vr(base+2*r,2)}, v11, {sr(sd,4)}, {so} offen offset:{im}")
    e(f"""buffer_load_dwordx4 {vr(SKR,4)}, v13, {sr(SC,4)}, s13 offen
          buffer_load_dwordx4 {vr(SKR+4,4)}, v13, {sr(SC,4)}, s13 offen offset:16
          s_branch K1_LD_DONE""")
    e("K1_LD_WO:")
    srd(e, SA, P_WO, 448 * 896)
    e("v_and_b32 v10, 31, v1")
    swap23(e, 11, 10, 12, 13)
    e(f"""v_lshrrev_b32 v12, 5, v1
          v_mul_u32_u24 v13, 3584, v12
          v_lshl_add_u32 v11, v11, 1, v13
          v_cmp_eq_u32 vcc, 0, v12
          s_and_b32 s9, s2, 15
          s_lshr_b32 s10, s2, 4
          v_cndmask_b32 v12, v9, v11, vcc
          s_mul_i32 s11, s9, 25088
          s_lshl_b32 s12, s10, 6
          s_add_u32 s11, s11, s12""")
    for q in range(4):
        for i in range(4):
            e(f"buffer_load_ushort v{64+4*q+i}, v{12 if q == 3 else 11}, {sr(SA,4)}, s11 offen offset:{896*i}")
        if q < 3: e("s_add_u32 s11, s11, 7168")
    e("s_branch K1_LD_DONE")
    e("K1_LD_H:")
    srd(e, SA, P_H, 448 * 4096); srd(e, SB, P_D, 896)
    e(f"""s_sub_u32 s9, s2, 224
          s_lshl_b32 s9, s9, 1
          s_add_u32 s9, s9, s3
          s_lshl_b32 s9, s9, 3
          v_add_u32 v10, s9, v6
          v_and_b32 v11, 7, v1
          v_lshlrev_b32 v12, 12, v10
          v_lshl_add_u32 v12, v11, 4, v12
          v_subrev_u32 v12, 64, v12
          v_cmp_lt_u32 vcc, 3, v11
          v_lshlrev_b32 v13, 1, v10
          s_nop 0
          v_cndmask_b32 v12, v9, v12, vcc
          buffer_load_dwordx4 {vr(64,4)}, v12, {sr(SA,4)}, 0 offen
          buffer_load_ushort v68, v13, {sr(SB,4)}, 0 offen
          s_branch K1_LD_DONE""")
    e("K1_LD_G:")
    srd(e, SA, P_GW, 896)
    e("""v_and_b32 v10, 7, v1
         v_lshlrev_b32 v10, 4, v10
         v_mul_u32_u24 v11, 896, v6
         v_add_u32 v11, v11, v10
         s_mul_i32 s9, s2, 7168""")
    for i in range(7):
        e(f"buffer_load_dwordx4 {vr(64+4*i,4)}, v11, {sr(SX,4)}, s9 offen offset:{128*i}")
    for i in range(7):
        e(f"buffer_load_dwordx4 {vr(92+4*i,4)}, v10, {sr(SA,4)}, 0 offen offset:{128*i}")
    e("K1_LD_DONE:")
    e("""s_cmp_eq_u32 s6, 0
         s_cbranch_scc1 K1_NOGEMM
         s_mul_i32 s70, s4, 96
         s_mul_i32 s7, s3, 24
         s_add_u32 s70, s70, s7
         s_mul_i32 s70, s70, 896
         s_lshl_b32 s71, s5, 8
         s_mul_i32 s7, s3, 43008
         s_add_u32 s71, s71, s7
         s_add_u32 s72, s4, s5
         s_mul_i32 s7, s72, 9363
         s_lshr_b32 s7, s7, 16
         s_mul_i32 s7, s7, 7
         s_sub_u32 s72, s72, s7
         s_mul_i32 s75, s3, 3072
         s_lshl_b32 s76, s3, 12
         s_add_u32 s76, s76, 12288
         s_mov_b32 s73, 0
         s_mov_b32 s74, 0
         s_bitcmp1_b32 s3, 0
         s_cbranch_scc0 K1_EVENW
         v_swap_b32 v3, v4
         K1_EVENW:""")
    def dma_chunk():
        e(f"""s_add_u32 m0, s73, s75
              s_lshl_b32 s7, s72, 7
              s_add_u32 s7, s7, s70
              buffer_load_dwordx4 v3, {sr(SX,4)}, s7 offen lds
              s_add_u32 s7, s7, {7168-1024}
              buffer_load_dwordx4 v4, {sr(SX,4)}, s7 offen offset:1024 lds
              s_add_u32 s7, s7, {7168-1024}
              buffer_load_dwordx4 v3, {sr(SX,4)}, s7 offen offset:2048 lds
              s_add_u32 m0, s73, s76
              s_mul_i32 s7, s72, {64*2688}
              s_add_u32 s7, s7, s71
              buffer_load_dwordx4 v5, {sr(SW,4)}, s7 offen lds""")
        for i in range(1, 4):
            e(f"""s_add_u32 s7, s7, {10752-1024}
                  buffer_load_dwordx4 v5, {sr(SW,4)}, s7 offen offset:{1024*i} lds""")
        e(f"""s_add_u32 s72, s72, 1
              s_cmp_eq_u32 s72, 7
              s_cselect_b32 s72, 0, s72
              s_add_u32 s73, s73, {K1_SLOT}
              s_cmp_eq_u32 s73, {K1_LDS}
              s_cselect_b32 s73, 0, s73
              s_add_u32 s74, s74, 1""")
    e("K1_DMA0:")
    dma_chunk()
    e("""s_cmp_lt_u32 s74, 4
         s_cbranch_scc1 K1_DMA0
         s_waitcnt vmcnt(28)
         s_branch K1_PREP
         K1_NOGEMM:
         s_waitcnt vmcnt(0)
         K1_PREP:""")
    e("""s_cmp_eq_u32 s3, 3
         s_cbranch_scc1 K1_C_G
         s_cmp_ge_u32 s2, 224
         s_cbranch_scc1 K1_C_H
         s_cmp_eq_u32 s3, 2
         s_cbranch_scc1 K1_C_WO""")
    KF, WF, UF, TP = 112, 156, 172, 204
    e("s_mov_b32 s15, 0xffff0000")
    for r in range(11):
        for p in range(2):
            e(f"""v_lshlrev_b32 v{KF+4*r+2*p}, 16, v{KR+2*r+p}
                  v_and_b32 v{KF+4*r+2*p+1}, s15, v{KR+2*r+p}""")
    for ch in range(4):
        for j in range(4):
            src = SKR + 2 * ch + (j >> 1)
            e(f"v_lshlrev_b32 v{WF+4*j+ch}, 16, v{src}" if j % 2 == 0 else f"v_and_b32 v{WF+4*j+ch}, s15, v{src}")
    for t in range(8):
        for p in range(2):
            u = vr(UF + 4 * t + 2 * p, 2)
            e(f"v_pk_mul_f32 {u}, {vr(KF+4*(t+3)+2*p,2)}, {vr(WF+2*p,2)}")
            for j in range(1, 4):
                e(f"v_pk_fma_f32 {u}, {vr(KF+4*(t+3-j)+2*p,2)}, {vr(WF+4*j+2*p,2)}, {u}")
            e(f"""v_lshlrev_b32 v{TP}, 16, v{VR_+2*t+p}
                  v_and_b32 v{TP+1}, s15, v{VR_+2*t+p}
                  v_pk_mul_f32 {u}, {u}, {vr(TP,2)}""")
    e(f"""v_mul_u32_u24 v11, 20480, v10
          v_lshl_add_u32 v11, v8, 4, v11
          s_mul_i32 s12, s10, {64*5120}
          s_mul_i32 s13, s11, 80
          s_add_u32 s12, s12, s13
          s_add_u32 s12, s12, {UT:#x}""")
    for ch in range(4):
        for m in range(4):
            e(f"v_cvt_pk_bf16_f32 v{64+4*ch+m}, v{UF+4*(7-2*m)+ch}, v{UF+4*(6-2*m)+ch}")
        e(f"buffer_store_dwordx4 {vr(64+4*ch,4)}, v11, {sr(SWS,4)}, s12 offen")
        if ch < 3: e("s_add_u32 s12, s12, 5120")
    e("s_branch K1_PREP_DONE")
    e("K1_C_WO:")
    for m in range(8):
        e(f"v_lshl_or_b32 v{80+m}, v{64+2*m+1}, 16, v{64+2*m}")
    e(f"""v_lshlrev_b32 v11, 4, v1
          s_lshl_b32 s11, s2, 11
          s_add_u32 s11, s11, {WOF:#x}
          buffer_store_dwordx4 {vr(80,4)}, v11, {sr(SWS,4)}, s11 offen
          buffer_store_dwordx4 {vr(84,4)}, v11, {sr(SWS,4)}, s11 offen offset:1024
          s_branch K1_PREP_DONE""")
    e("K1_C_H:")
    e(f"""s_cmp_ge_u32 s2, 252
          s_cbranch_scc1 K1_PREP_DONE
          s_cmp_eq_u32 s3, 2
          s_cbranch_scc1 K1_PREP_DONE
          v_lshlrev_b32 v69, 16, v64
          v_lshlrev_b32 v68, 16, v68
          v_add_f32 v69, v69, v68
          v_and_b32 v70, 0xffff0000, v64
          v_cvt_pk_bf16_f32 v69, v69, v70
          v_cmp_eq_u32 vcc, 4, v11
          v_lshlrev_b32 v12, 4, v1
          s_lshl_b32 s9, s9, 7
          v_cndmask_b32 v64, v64, v69, vcc
          s_add_u32 s9, s9, {HP:#x}
          buffer_store_dwordx4 {vr(64,4)}, v12, {sr(SWS,4)}, s9 offen
          s_branch K1_PREP_DONE""")
    e("K1_C_G:")
    e("v_mov_b32 v12, 0")
    for i in range(28):
        e(f"v_dot2_f32_bf16 v12, v{64+i}, v{92+i}, v12")
    e(f"""s_nop 3
          v_add_f32_dpp v12, v12, v12 quad_perm:[1,0,3,2] row_mask:0xf bank_mask:0xf
          s_nop 1
          v_add_f32_dpp v12, v12, v12 quad_perm:[2,3,0,1] row_mask:0xf bank_mask:0xf
          s_nop 1
          v_add_f32_dpp v12, v12, v12 row_half_mirror row_mask:0xf bank_mask:0xf
          v_mul_f32 v12, {f32(-math.log2(math.e))}, v12
          v_exp_f32 v12, v12
          v_lshlrev_b32 v13, 2, v6
          v_add_f32 v12, 1.0, v12
          v_rcp_f32 v12, v12
          s_lshl_b32 s9, s2, 5
          s_add_u32 s9, s9, {GG:#x}
          buffer_store_dword v12, v13, {sr(SWS,4)}, s9 offen""")
    e("K1_PREP_DONE:")
    e("s_cmp_eq_u32 s6, 0\n s_cbranch_scc1 K1_END")
    ACC, XF, WFR = 16, 112, 160
    e("""v_and_b32 v6, 31, v1
         v_lshrrev_b32 v7, 5, v1
         v_bfe_u32 v9, v1, 1, 3
         v_xor_b32 v9, v9, v7
         v_lshlrev_b32 v10, 7, v6
         v_lshl_add_u32 v10, v9, 4, v10
         v_xor_b32 v11, 32, v10
         v_xor_b32 v12, 64, v10
         v_xor_b32 v13, 96, v10
         v_bfe_u32 v9, v1, 2, 2
         v_lshl_add_u32 v14, v7, 3, v9
         v_lshlrev_b32 v14, 8, v14
         v_and_b32 v15, 3, v1
         v_lshlrev_b32 v15, 3, v15
         v_bfe_u32 v2, v1, 4, 1
         v_lshl_add_u32 v15, v2, 5, v15
         s_lshl_b32 s7, s3, 6
         v_add_u32 v15, s7, v15
         v_lshlrev_b32 v9, 6, v9
         v_xor_b32 v15, v15, v9
         v_add_u32 v14, v14, v15
         v_add_u32 v14, 12288, v14""")
    for i in range(48): e(f"v_mov_b32 v{ACC+i}, 0")
    e("""s_lshl_b32 s77, s5, 7
         s_lshl_b32 s7, s3, 5
         s_add_u32 s77, s77, s7
         s_mov_b32 s78, 0
         s_mov_b32 s79, 0
         K1_LOOP:
         s_waitcnt vmcnt(21)
         s_cmp_lt_u32 s78, 4
         s_cbranch_scc1 K1_W
         s_waitcnt vmcnt(14)
         s_cmp_lt_u32 s78, 5
         s_cbranch_scc1 K1_W
         s_waitcnt vmcnt(7)
         s_cmp_lt_u32 s78, 6
         s_cbranch_scc1 K1_W
         s_waitcnt vmcnt(0)
         K1_W:
         s_barrier""")
    def reads(s):
        for u in range(2):
            e(f"ds_read_b64_tr_b16 {vr(WFR+4*s+2*u,2)}, v14 offset:{(16*s+4*u)*256}")
        for t in range(3):
            e(f"ds_read_b128 {vr(XF+12*s+4*t,4)}, v{10+s} offset:{4096*t}")
    reads(0); reads(1); reads(2)
    e("s_cmp_ge_u32 s74, 7\n s_cbranch_scc1 K1_NODMA")
    dma_chunk()
    e("K1_NODMA:")
    e("s_cmp_ge_u32 s77, 896\n s_cbranch_scc1 K1_VPATH")
    def mm(s, vpath):
        for t in range(3):
            a, b = vr(WFR + 4 * s, 4), vr(XF + 12 * s + 4 * t, 4)
            if vpath: a, b = b, a
            e(f"v_mfma_f32_32x32x16_bf16 {vr(ACC+16*t,16)}, {a}, {b}, {vr(ACC+16*t,16)}")
    for vpath in (0, 1):
        if vpath: e("K1_VPATH:")
        e("s_waitcnt lgkmcnt(10)"); mm(0, vpath); reads(3)
        e("s_waitcnt lgkmcnt(10)"); mm(1, vpath)
        e("s_waitcnt lgkmcnt(5)"); mm(2, vpath)
        e("s_waitcnt lgkmcnt(0)"); mm(3, vpath)
        if not vpath: e("s_branch K1_JOIN")
    e(f"""K1_JOIN:
          s_add_u32 s79, s79, {K1_SLOT}
          s_cmp_eq_u32 s79, {K1_LDS}
          s_mov_b32 s7, {K1_SLOT}
          s_cselect_b32 s7, {(-4*K1_SLOT) & 0xffffffff:#x}, s7
          s_cselect_b32 s79, 0, s79""")
    for i in range(10, 15): e(f"v_add_u32 v{i}, s7, v{i}")
    e("""s_add_u32 s78, s78, 1
         s_cmp_lt_u32 s78, 7
         s_cbranch_scc1 K1_LOOP""")
    e("""s_cmp_ge_u32 s77, 1344
         s_cbranch_scc1 K1_END
         s_mul_i32 s81, s4, 3
         s_nop 7
         s_cmp_ge_u32 s77, 896
         s_cbranch_scc1 K1_EPV""")
    e(f"""s_mov_b32 s82, 0x20000
          s_mov_b32 s83, 2048
          s_mov_b32 s84, {QF:#x}
          s_mov_b32 s85, {f32(QSCALE)}
          s_mov_b32 s86, 0
          s_mov_b32 s87, 0
          v_mov_b32 v9, v6
          s_cmp_lt_u32 s77, 448
          s_cbranch_scc1 K1_ISQ
          s_sub_u32 s77, s77, 448
          s_mov_b32 s82, 0x40000
          s_mov_b32 s83, 4096
          s_mov_b32 s84, {KV:#x}
          s_mov_b32 s85, 1.0
          s_mov_b32 s86, 0x3f803f80
          s_mov_b32 s87, 0x00003f80""")
    swap23(e, 9, 6, 2, 3)
    e(f"""K1_ISQ:
          v_lshlrev_b32 v9, 4, v9
          v_lshl_add_u32 v10, v7, 3, v9
          s_sub_u32 s7, s82, 1528
          v_mul_lo_u32 v11, v7, s7
          v_add_u32 v11, v11, v9
          v_xor_b32 v12, 8, v11
          v_mov_b32 v2, s86
          v_mov_b32 v3, s87
          s_mul_i32 s7, s81, s83
          s_add_u32 s84, s84, s7""")
    for i in range(48): e(f"v_mul_f32 v{ACC+i}, s85, v{ACC+i}")
    for i in range(24): e(f"v_cvt_pk_bf16_f32 v{64+i}, v{ACC+2*i}, v{ACC+2*i+1}")
    for g in range(4):
        e(f"""s_add_u32 s8, s77, {8*g}
              s_mul_i32 s9, s8, 1171
              s_lshr_b32 s9, s9, 16
              s_mul_i32 s10, s9, 56
              s_sub_u32 s10, s8, s10
              s_lshl_b32 s9, s9, 1
              s_mul_i32 s9, s9, s82
              s_lshl_b32 s11, s10, 6
              s_add_u32 s9, s9, s11
              s_sub_u32 s11, s82, 1536
              s_cmp_gt_u32 s10, 24
              s_cselect_b32 s11, s11, 0
              s_add_u32 s9, s9, s11
              s_add_u32 s9, s9, s84
              s_cmp_eq_u32 s10, 24
              s_cbranch_scc1 K1_STR{g}""")
        def tiles(strad):
            for t in range(3):
                e(f"buffer_store_dwordx2 {vr(64+8*t+2*g,2)}, v{11 if strad else 10}, {sr(SWS,4)}, s9 offen")
                if strad: e(f"buffer_store_dwordx2 v[2:3], v12, {sr(SWS,4)}, s9 offen")
                if t == 0: e(f"s_cmp_eq_u32 s4, 21\n s_cbranch_scc1 K1_G{g}DONE")
                if t < 2: e("s_add_u32 s9, s9, s83")
        tiles(False)
        e(f"s_branch K1_G{g}DONE\n K1_STR{g}:")
        tiles(True)
        e(f"K1_G{g}DONE:")
    e("s_endpgm")
    e("K1_EPV:")
    e(f"""s_sub_u32 s77, s77, 896
          v_add_u32 v9, s77, v6
          v_mul_u32_u24 v10, 2341, v9
          v_lshrrev_b32 v10, 16, v10
          v_mul_u32_u24 v11, 28, v10
          v_sub_u32 v9, v9, v11
          v_lshl_add_u32 v9, v7, 5, v9
          v_lshlrev_b32 v9, 4, v9
          v_lshl_add_u32 v9, v10, 18, v9
          s_lshl_b32 s9, s81, 12
          s_add_u32 s9, s9, {KV:#x}""")
    for i in range(24): e(f"v_cvt_pk_bf16_f32 v{64+i}, v{ACC+2*i}, v{ACC+2*i+1}")
    for t in range(3):
        e(f"""buffer_store_dwordx4 {vr(64+8*t,4)}, v9, {sr(SWS,4)}, s9 offen offset:2048
              buffer_store_dwordx4 {vr(64+8*t+4,4)}, v9, {sr(SWS,4)}, s9 offen offset:3072""")
        if t == 0: e("s_cmp_eq_u32 s4, 21\n s_cbranch_scc1 K1_END")
        if t < 2: e("s_add_u32 s9, s9, 4096")
    e("K1_END:\n s_endpgm")
    return (L, 256, 256, K1_LDS, desc(L, 208, 208))

def build(kernels):
    e = Asm()
    infos = [k(e) for k in kernels]
    out = [f"; {NAME}: generated by dev/gen.py"]
    for L, grid, block, lds, _ in infos:
        out.append(f"; @launch kernel={L} grid=({grid},1,1) block=({block},1,1) lds={lds}")
    out.append('.amdgcn_target "amdgcn-amd-amdhsa--gfx950"\n.text')
    out.append(e.text())
    out.append('.section .rodata,"a"')
    for L, _, _, _, d in infos:
        out.append(".p2align 6\n" + d)
    return "\n".join(out)

if __name__ == "__main__":
    from gen23 import k2, k3
    ks = [k1, k2, k3]
    path = sys.argv[1] if len(sys.argv) > 1 else f"cdna_kernels/{NAME}.s"
    open(path, "w").write(build(ks))
```

```python
import sys
from gen import *
from gen23 import k2, k3
def mk_empty(n):
    def k(e):
        L = f"empty{n}_kernel"
        head(e, L); e("s_endpgm")
        return (L, 256, 256, 0, desc(L, 8, 8))
    return k
open("v_e1.s", "w").write(build([k1, k2, k3, mk_empty(1)]))
open("v_e3.s", "w").write(build([k1, k2, k3, mk_empty(1), mk_empty(2), mk_empty(3)]))
open("v_f1.s", "w").write(build([mk_empty(1), k1, k2, k3]))
```
